```python
import torch

def _softmax(x, axis=-1):
    return torch.softmax(x, dim=axis)
def _gelu(x):
    return torch.nn.functional.gelu(x, approximate="tanh")
def _silu(x):
    return torch.nn.functional.silu(x)
def _sigmoid(x):
    return torch.sigmoid(x)
def _layernorm(x, axis=-1, eps=1e-5):
    m = x.mean(dim=axis, keepdim=True)
    v = x.var(dim=axis, keepdim=True, unbiased=False)
    return (x - m) / torch.sqrt(v + eps)
def _scatter_add(tgt, idx, src, axis=0):
    return tgt.clone().index_add_(axis, idx, src)
def _segment_sum(src, seg, n):
    out = torch.zeros((n,) + src.shape[1:], dtype=src.dtype)
    return out.index_add_(0, seg, src)
def _pad(x, pw):
    flat = tuple(v for pair in reversed(pw) for v in pair)
    return torch.nn.functional.pad(x, flat)

kernel_name = 'sequential_preLN__spectral_fnet__dense_activation_relu__prompt'

def setup_inputs():

    _w = (lambda a: (lambda t: t.to(torch.bfloat16) if t.is_floating_point() else t)(torch.as_tensor(a)))
    def _A_setup():
        B, S, D = 1, 2048, 448
        ns = torch.arange(S)[:, None] * torch.arange(S)[None, :]
        nd = torch.arange(D)[:, None] * torch.arange(D)[None, :]
        Ws_re = torch.cos(-2.0 * torch.pi * ns / S).to(float)
        Ws_im = torch.sin(-2.0 * torch.pi * ns / S).to(float)
        Wd_re = torch.cos(-2.0 * torch.pi * nd / D).to(float)
        Wd_im = torch.sin(-2.0 * torch.pi * nd / D).to(float)
        return {
            "x": _w((lambda *s: torch.randn(*s, dtype=torch.bfloat16) * 0.05)(B, S, D)),
            "dft_seq_re": _w(Ws_re),
            "dft_seq_im": _w(Ws_im),
            "dft_hid_re": _w(Wd_re),
            "dft_hid_im": _w(Wd_im),
        }
    _A_in = _A_setup()

    def _B_setup():
        B, S, D, Dff = 1, 2048, 448, 1792
        return {
            "x": _w((lambda *s: torch.randn(*s, dtype=torch.bfloat16) * 0.05)(B, S, D)),
            "w1": _w((lambda *s: torch.randn(*s, dtype=torch.bfloat16) * 0.4)(D, Dff)),
            "w2": _w((lambda *s: torch.randn(*s, dtype=torch.bfloat16) * 0.4)(Dff, D)),
        }
    _B_in = _B_setup()

    return {
        "A_x": _A_in["x"],
        "A_dft_seq_re": _A_in["dft_seq_re"],
        "A_dft_seq_im": _A_in["dft_seq_im"],
        "A_dft_hid_re": _A_in["dft_hid_re"],
        "A_dft_hid_im": _A_in["dft_hid_im"],
        "B_x": _B_in["x"],
        "B_w1": _B_in["w1"],
        "B_w2": _B_in["w2"],
    }

def reference(A_x, A_dft_seq_re, A_dft_seq_im, A_dft_hid_re, A_dft_hid_im, B_x, B_w1, B_w2):
    def _A_ref(x, dft_seq_re, dft_seq_im, dft_hid_re, dft_hid_im):
        a = torch.einsum("bsd,ed->bse", x, dft_hid_re)
        b = torch.einsum("bsd,ed->bse", x, dft_hid_im)
        y = torch.einsum("ts,bse->bte", dft_seq_re, a) - torch.einsum("ts,bse->bte", dft_seq_im, b)
        return y

    def _B_ref(x, w1, w2):
        h = torch.einsum("bsd,df->bsf", x, w1)
        zero = torch.zeros_like(h)
        h = torch.maximum(h, zero)
        return torch.einsum("bsf,fd->bsd", h, w2)

    x = A_x
    h = x + _A_ref(_layernorm(x, axis=-1), A_dft_seq_re, A_dft_seq_im, A_dft_hid_re, A_dft_hid_im)
    h2 = h + _B_ref(_layernorm(h, axis=-1), B_w1, B_w2)
    return h2
```

```python
HEAD_ONE = """; @launch grid=({gx},1,1) block=({bx},1,1) lds={lds}
.amdgcn_target "amdgcn-amd-amdhsa--gfx950"
.text
"""
def kernel(name, body, vgpr=256, sgpr=102, accum=256):
    return f""".globl {name}
.p2align 8
.type {name},@function
{name}:
{body}
s_endpgm
.section .rodata,"a"
.p2align 6
.amdhsa_kernel {name}
  .amdhsa_next_free_vgpr {vgpr}
  .amdhsa_next_free_sgpr {sgpr}
  .amdhsa_accum_offset {accum}
  .amdhsa_group_segment_fixed_size 0
  .amdhsa_kernarg_size 88
  .amdhsa_user_sgpr_count 2
  .amdhsa_user_sgpr_kernarg_segment_ptr 1
  .amdhsa_system_sgpr_workgroup_id_x 1
.end_amdhsa_kernel
.text
"""
def launch_line(name, gx, bx, lds):
    return f"; @launch kernel={name} grid=({gx},1,1) block=({bx},1,1) lds={lds}\n"
TARGET = '.amdgcn_target "amdgcn-amd-amdhsa--gfx950"\n.text\n'
```

```python
from asmgen import *
import sys
S, D, F = 2048, 448, 1792
WS_XN, WS_A, WS_B, WS_H, WS_HN, WS_HH = [i*(16<<20) for i in range(6)]
def srd(dst, off, size, wsoff=0):
    t = f"s_load_dwordx2 s[{dst}:{dst+1}], s[0:1], {off}\ns_waitcnt lgkmcnt(0)\n"
    if wsoff:
        t += f"s_add_u32 s{dst}, s{dst}, {wsoff}\ns_addc_u32 s{dst+1}, s{dst+1}, 0\n"
    t += f"s_mov_b32 s{dst+2}, {size}\ns_mov_b32 s{dst+3}, 0x20000\n"
    return t
def idx_mn(N):
    sh = {448:6, 1792:8}[N]
    magic = (1<<32)//7 + 1
    return f"""s_lshl_b32 s3, s2, 8
v_add_u32 v3, s3, v0
v_lshrrev_b32 v4, {sh}, v3
s_mov_b32 s40, {magic}
v_mul_hi_u32 v1, v4, s40
s_mov_b32 s41, {N}
v_mul_lo_u32 v2, v1, s41
v_sub_u32 v2, v3, v2
"""
def ld(dt, reg, voff, s):
    if dt == 'bf16':
        return f"buffer_load_ushort v{reg}, v{voff}, s[{s}:{s+3}], 0 offen\n", f"v_lshlrev_b32 v{reg}, 16, v{reg}\n"
    return f"buffer_load_dword v{reg}, v{voff}, s[{s}:{s+3}], 0 offen\n", ""
def dotloop(name, tag, K, sA, dtA, a_m, a_k, sB, dtB, b_k, b_n, acc, neg=False):
    t = f"s_mov_b32 s42, {a_m}\nv_mul_lo_u32 v10, v1, s42\ns_mov_b32 s42, {b_n}\nv_mul_lo_u32 v11, v2, s42\n"
    t += f"s_mov_b32 s43, 0\nL_{name}_{tag}:\n"
    U = 4
    for u in range(U):
        a, a2 = ld(dtA, 20+u, 10, sA); b, b2 = ld(dtB, 30+u, 11, sB)
        t += a + b + f"v_add_u32 v10, {a_k}, v10\nv_add_u32 v11, {b_k}, v11\n"
    t += "s_waitcnt vmcnt(0)\n"
    for u in range(U):
        a, a2 = ld(dtA, 20+u, 10, sA); b, b2 = ld(dtB, 30+u, 11, sB)
        t += a2 + b2
        t += (f"v_fma_f32 v{acc}, -v{20+u}, v{30+u}, v{acc}\n" if neg else f"v_fma_f32 v{acc}, v{20+u}, v{30+u}, v{acc}\n")
    t += f"s_add_u32 s43, s43, {U}\ns_cmp_lt_u32 s43, {K}\ns_cbranch_scc1 L_{name}_{tag}\n"
    return t
def guard(name, nwg):
    return f"s_cmp_ge_u32 s2, {nwg}\ns_cbranch_scc1 L_end_{name}\n"
def ln_kernel(name, src_off, src_ws, dtA, dst_ws):
    nwg = S//256
    es = 2 if dtA=='bf16' else 4
    t = guard(name, nwg)
    t += srd(8, src_off, S*D*es, src_ws) + srd(12, 80, S*D*4, dst_ws)
    t += f"s_lshl_b32 s3, s2, 8\nv_add_u32 v1, s3, v0\ns_mov_b32 s42, {D*es}\nv_mul_lo_u32 v10, v1, s42\nv_mov_b32 v4, 0\nv_mov_b32 v5, 0\nv_mov_b32 v12, v10\ns_mov_b32 s43, 0\n"
    a, a2 = ld(dtA, 20, 12, 8)
    t += f"L_{name}_s:\n{a}s_waitcnt vmcnt(0)\n{a2}v_add_f32 v4, v4, v20\nv_add_u32 v12, {es}, v12\ns_add_u32 s43, s43, 1\ns_cmp_lt_u32 s43, {D}\ns_cbranch_scc1 L_{name}_s\n"
    t += f"v_mul_f32 v4, {1.0/D!r}, v4\nv_mov_b32 v12, v10\ns_mov_b32 s43, 0\n"
    t += f"L_{name}_v:\n{a}s_waitcnt vmcnt(0)\n{a2}v_sub_f32 v20, v20, v4\nv_fma_f32 v5, v20, v20, v5\nv_add_u32 v12, {es}, v12\ns_add_u32 s43, s43, 1\ns_cmp_lt_u32 s43, {D}\ns_cbranch_scc1 L_{name}_v\n"
    t += f"v_mul_f32 v5, {1.0/D!r}, v5\nv_add_f32 v5, 0x3727c5ac, v5\nv_rsq_f32 v5, v5\nv_mov_b32 v12, v10\ns_mov_b32 s42, {D*4}\nv_mul_lo_u32 v13, v1, s42\ns_mov_b32 s43, 0\n"
    t += f"L_{name}_n:\n{a}s_waitcnt vmcnt(0)\n{a2}v_sub_f32 v20, v20, v4\nv_mul_f32 v20, v20, v5\nbuffer_store_dword v20, v13, s[12:15], 0 offen\nv_add_u32 v12, {es}, v12\nv_add_u32 v13, 4, v13\ns_add_u32 s43, s43, 1\ns_cmp_lt_u32 s43, {D}\ns_cbranch_scc1 L_{name}_n\n"
    t += f"s_waitcnt vmcnt(0)\nL_end_{name}:\n"
    return kernel(name, t, vgpr=64, accum=64), nwg
def out_off(N, es):
    return f"s_mov_b32 s42, {N}\nv_mul_lo_u32 v14, v1, s42\nv_add_u32 v14, v14, v2\nv_lshlrev_b32 v14, {1 if es==2 else 2}, v14\n"
def k_hid(name, w_off, dst):
    nwg = S*D//256
    t = guard(name, nwg) + srd(8, 80, S*D*4, WS_XN) + srd(12, w_off, D*D*2) + srd(16, 80, S*D*4, dst) + idx_mn(D) + "v_mov_b32 v6, 0\n"
    t += dotloop(name, "a", D, 8, 'f32', D*4, 4, 12, 'bf16', 2, D*2, 6)
    t += out_off(D, 4) + f"buffer_store_dword v6, v14, s[16:19], 0 offen\ns_waitcnt vmcnt(0)\nL_end_{name}:\n"
    return kernel(name, t, vgpr=64, accum=64), nwg
def k_seq(name):
    nwg = S*D//256
    t = guard(name, nwg) + srd(8, 8, S*S*2) + srd(12, 80, S*D*4, WS_A) + srd(16, 16, S*S*2) + srd(20, 80, S*D*4, WS_B) + srd(24, 0, S*D*2) + srd(28, 80, S*D*4, WS_H) + idx_mn(D) + "v_mov_b32 v6, 0\n"
    t += dotloop(name, "a", S, 8, 'bf16', S*2, 2, 12, 'f32', D*4, 4, 6)
    t += dotloop(name, "b", S, 16, 'bf16', S*2, 2, 20, 'f32', D*4, 4, 6, neg=True)
    t += out_off(D, 2) + "buffer_load_ushort v7, v14, s[24:27], 0 offen\ns_waitcnt vmcnt(0)\nv_lshlrev_b32 v7, 16, v7\nv_add_f32 v6, v6, v7\n"
    t += out_off(D, 4) + f"buffer_store_dword v6, v14, s[28:31], 0 offen\ns_waitcnt vmcnt(0)\nL_end_{name}:\n"
    return kernel(name, t, vgpr=64, accum=64), nwg
def k_f1(name):
    nwg = S*F//256
    t = guard(name, nwg) + srd(8, 80, S*D*4, WS_HN) + srd(12, 48, D*F*2) + srd(16, 80, S*F*4, WS_HH) + idx_mn(F) + "v_mov_b32 v6, 0\n"
    t += dotloop(name, "a", D, 8, 'f32', D*4, 4, 12, 'bf16', F*2, 2, 6)
    t += "v_max_f32 v6, 0, v6\n" + out_off(F, 4) + f"buffer_store_dword v6, v14, s[16:19], 0 offen\ns_waitcnt vmcnt(0)\nL_end_{name}:\n"
    return kernel(name, t, vgpr=64, accum=64), nwg
def k_f2(name):
    nwg = S*D//256
    t = guard(name, nwg) + srd(8, 80, S*F*4, WS_HH) + srd(12, 56, D*F*2) + srd(16, 64, S*D*2) + srd(20, 80, S*D*4, WS_H) + idx_mn(D) + "v_mov_b32 v6, 0\n"
    t += dotloop(name, "a", F, 8, 'f32', F*4, 4, 12, 'bf16', D*2, 2, 6)
    t += out_off(D, 4) + "buffer_load_dword v7, v14, s[20:23], 0 offen\ns_waitcnt vmcnt(0)\nv_add_f32 v6, v6, v7\nv_cvt_pk_bf16_f32 v6, v6, v6\n"
    t += out_off(D, 2) + f"buffer_store_short v6, v14, s[16:19], 0 offen\ns_waitcnt vmcnt(0)\nL_end_{name}:\n"
    return kernel(name, t, vgpr=64, accum=64), nwg
def noop(name, nwg):
    return kernel(name, f"s_nop 0\n", vgpr=8, accum=8), nwg
def make(n_extra=0, extra_wg=256):
    ks = []
    ks.append(("ln1_kernel",)+ln_kernel("ln1_kernel", 0, 0, 'bf16', WS_XN))
    ks.append(("hida_kernel",)+k_hid("hida_kernel", 24, WS_A))
    ks.append(("hidb_kernel",)+k_hid("hidb_kernel", 32, WS_B))
    ks.append(("seq_kernel",)+k_seq("seq_kernel"))
    ks.append(("ln2_kernel",)+ln_kernel("ln2_kernel", 80, WS_H, 'f32', WS_HN))
    ks.append(("f1_kernel",)+k_f1("f1_kernel"))
    ks.append(("f2_kernel",)+k_f2("f2_kernel"))
    head = "; naive reference-style implementation\n"
    body = ""
    for name, txt, nwg in ks:
        head += launch_line(name, nwg, 256, 0); body += txt
    if n_extra:
        txt, nwg = noop("noop_kernel", extra_wg)
        body += txt
        for i in range(n_extra): head += launch_line("noop_kernel", nwg, 256, 0)
    return head + TARGET + body
if __name__ == "__main__":
    for n in (0, 10, 40):
        open(f"naive{n}.s", "w").write(make(n))
```

```python
import struct
S, D, F = 2048, 448, 1792
ROWB = 896
WS_Z   = 0
WS_W1F = 0x200000
WS_W2F = 0x400000
WS_H   = 0x600000
WS_P   = 0x800000
WS_END = WS_P + 32*7*57344
def f32(x): return "0x%08x" % struct.unpack("<I", struct.pack("<f", x))[0]
K1, K2, K3 = "fnet_k1_kernel", "fnet_k2_kernel", "fnet_k3_kernel"
```

```python
import re
TRANS = ("v_cos_f32", "v_sin_f32", "v_rsq_f32", "v_rcp_f32", "v_exp_f32", "v_log_f32", "v_sqrt_f32")
def regs_of(tok):
    tok = tok.strip()
    if tok.startswith("-"): tok = tok[1:]
    m = re.fullmatch(r"abs\((.*)\)", tok)
    if m: tok = m.group(1)
    m = re.fullmatch(r"([vas])(\d+)", tok)
    if m: return [(m.group(1), int(m.group(2)))]
    m = re.fullmatch(r"([vas])\[(\d+):(\d+)\]", tok)
    if m: return [(m.group(1), i) for i in range(int(m.group(2)), int(m.group(3)) + 1)]
    if tok == "vcc": return [("s", "vcc")]
    if tok == "exec": return [("s", "exec")]
    if tok in ("exec_lo", "exec_hi"): return [("s", "exec")]
    if tok == "m0": return [("s", "m0")]
    return []
def split_ops(s):
    out, depth, cur = [], 0, ""
    for ch in s:
        if ch in "[(": depth += 1
        if ch in "])": depth -= 1
        if ch == "," and depth == 0:
            out.append(cur.strip()); cur = ""
        else: cur += ch
    if cur.strip(): out.append(cur.strip())
    return out
class Ins:
    def __init__(self, text):
        self.text = text
        t = text.split(";")[0].strip()
        self.label = t.endswith(":")
        parts = t.split(None, 1)
        self.mn = parts[0] if parts else ""
        rest = parts[1] if len(parts) > 1 else ""
        ops = split_ops(rest)
        self.mods = ""
        if ops:
            last = ops[-1].split(None, 1)
            ops[-1] = last[0]
            self.mods = last[1] if len(last) > 1 else ""
        self.ops = ops
        mn = self.mn
        self.kind = "other"; self.w = []; self.r = []
        R = lambda i: regs_of(ops[i]) if i < len(ops) else []
        if mn.startswith("v_mfma"):
            self.kind = "mfma"; self.passes = 8 if "32x32" in mn else 4
            self.w = R(0); self.ra = R(1); self.rb = R(2); self.rc = R(3); self.r = self.ra + self.rb + self.rc
        elif mn.startswith("v_"):
            self.kind = "valu"
            if mn.startswith("v_cmp"):
                self.w = R(0); self.r = R(1) + R(2)
            elif mn.startswith("v_permlane") and "swap" in mn:
                self.w = R(0) + R(1); self.r = R(0) + R(1)
            elif mn.startswith(("v_dot2c", "v_fmac")):
                self.w = R(0); self.r = R(0) + R(1) + R(2)
            elif mn.startswith("v_cndmask"):
                self.w = R(0); self.r = R(1) + R(2) + (R(3) if len(ops) > 3 else [("s", "vcc")])
            elif mn.startswith(("v_add_co", "v_addc_co")):
                self.w = R(0) + R(1); self.r = sum((R(i) for i in range(2, len(ops))), [])
            else:
                self.w = R(0); self.r = sum((R(i) for i in range(1, len(ops))), [])
            self.trans = mn.replace("_e32", "").replace("_e64", "") in TRANS
            self.dot = mn.startswith("v_dot")
        elif mn.startswith("buffer_") or mn.startswith("global_"):
            self.kind = "vmem"
            self.lds = "lds" in self.mods.split()
            if "load" in mn and not self.lds:
                self.w = R(0); self.r = sum((R(i) for i in range(1, len(ops))), [])
                self.data = []
            elif self.lds:
                self.r = sum((R(i) for i in range(0, len(ops))), []) + [("s", "m0")]; self.data = []
            else:
                self.r = sum((R(i) for i in range(0, len(ops))), []); self.data = R(0)
            self.wide = mn.endswith(("x3", "x4")) and "store" in mn
        elif mn.startswith("ds_"):
            self.kind = "ds"
            if "read" in mn or "bpermute" in mn or "swizzle" in mn:
                self.w = R(0); self.r = sum((R(i) for i in range(1, len(ops))), [])
            else:
                self.r = sum((R(i) for i in range(0, len(ops))), [])
        elif mn == "s_nop":
            self.kind = "nop"; self.n = int(ops[0], 0) + 1
        elif mn == "s_waitcnt":
            self.kind = "wait"
        elif mn.startswith("s_load") or mn.startswith("s_mem"):
            self.kind = "smem"; self.w = R(0); self.r = R(1)
        elif mn.startswith("s_"):
            self.kind = "salu"
            if mn.startswith(("s_cmp", "s_cbranch", "s_branch", "s_barrier", "s_endpgm", "s_setprio", "s_sleep", "s_bitcmp")):
                self.r = sum((R(i) for i in range(0, len(ops))), [])
            else:
                self.w = R(0); self.r = sum((R(i) for i in range(1, len(ops))), [])
                if "saveexec" in mn: self.w += [("s", "exec")]
class Emit:
    def __init__(self, check_waits=True):
        self.out = []
        self.hist = []
        self.pos = 0
        self.check_waits = check_waits
        self.vmq = []; self.lgq = []
        self.errors = []
        self.nnop = 0
        self.quiet = False
    def need(self, ins):
        extra = 0
        rs = set(ins.r); ws = set(ins.w)
        for (p, ppos) in reversed(self.hist):
            dist = self.pos - ppos - 1
            if dist > 24: break
            req = 0
            pw = set(p.w)
            if p.kind == "valu":
                vw = {x for x in pw if x[0] in "va"}
                sw = {x for x in pw if x[0] == "s"}
                if ins.kind == "mfma" and vw & rs: req = max(req, 2)
                if ins.kind == "valu":
                    if p.trans and not ins.trans and vw & rs: req = max(req, 1)
                    if ins.mn.startswith(("v_readfirstlane", "v_readlane")) and vw & rs: req = max(req, 1)
                    if ins.mn.startswith("v_permlane") and vw & rs: req = max(req, 2)
                    if "dpp" in ins.mn or "row_" in ins.mods or "quad_perm" in ins.mods:
                        if vw & rs: req = max(req, 2)
                    if sw & rs: req = max(req, 2)
                    if p.dot and (vw & (rs | ws)):
                        same = p.mn == ins.mn
                        if not same: req = max(req, 3)
                        else:
                            ab = set(regs_of(ins.ops[1])) | set(regs_of(ins.ops[2]))
                            if vw & ab: req = max(req, 3)
                if p.dot and ins.kind in ("ds", "vmem", "mfma") and vw & rs: req = max(req, 3)
                if ins.kind == "vmem" and sw & rs: req = max(req, 5)
                if ins.kind in ("salu",) and sw & rs: req = max(req, 1)
            if p.kind == "mfma":
                n_valu = 8 if p.passes == 4 else 12
                if ins.kind == "mfma":
                    if pw & (set(ins.ra) | set(ins.rb)): req = max(req, n_valu)
                    if pw & set(ins.rc):
                        if not (ins.rc == p.w and ins.passes == p.passes): req = max(req, 6 if p.passes == 4 else 10)
                    elif pw & ws:
                        req = max(req, n_valu)
                elif ins.kind in ("valu", "vmem", "ds"):
                    if pw & (rs | ws): req = max(req, n_valu)
                if ins.kind == "valu" and set(p.rc) & ws: req = max(req, 3 if p.passes == 4 else 7)
            if p.kind == "vmem" and getattr(p, "wide", False) and ins.kind in ("valu", "mfma"):
                if set(p.data) & ws: req = max(req, 2)
            if p.kind == "vmem" and getattr(p, "wide", False) and ins.kind in ("ds", "vmem"):
                if set(p.data) & ws: req = max(req, 1)
            if p.kind == "salu" and ("s", "m0") in pw and ins.kind == "vmem" and getattr(ins, "lds", False): req = max(req, 1)
            if req - dist > extra: extra = req - dist
        return extra
    def waits(self, ins):
        if not self.check_waits: return
        touched = set(ins.r) | set(ins.w)
        for q, nm in ((self.vmq, "vmcnt"), (self.lgq, "lgkmcnt")):
            for (p, dst) in q:
                if dst & touched:
                    self.errors.append(f"missing {nm} wait: '{ins.text.strip()}' touches result of '{p.text.strip()}'")
        if ins.kind == "vmem":
            self.vmq.append((ins, set(ins.w)))
        elif ins.kind == "ds":
            self.lgq.append((ins, set(ins.w)))
        elif ins.kind == "smem":
            n = 2 if len(ins.w) > 1 or ins.mn.startswith("s_mem") else 1
            self.lgq.append((ins, set(ins.w)))
            if n == 2: self.lgq.append((ins, set()))
        elif ins.kind == "wait":
            m = re.search(r"vmcnt\((\d+)\)", ins.text)
            if m:
                n = int(m.group(1))
                while len(self.vmq) > n: self.vmq.pop(0)
            m = re.search(r"lgkmcnt\((\d+)\)", ins.text)
            if m:
                n = int(m.group(1))
                if n > 0 and any(p.kind == "smem" for p, _ in self.lgq):
                    self.errors.append(f"counted lgkmcnt with SMEM outstanding: {ins.text}")
                while len(self.lgq) > n: self.lgq.pop(0)
    def __call__(self, text):
        for line in text.split("\n"):
            s = line.split(";")[0].strip()
            if not s: continue
            ins = Ins(line.strip())
            if ins.label or ins.mn.startswith("."):
                if not self.quiet: self.out.append(line.strip())
                continue
            extra = self.need(ins)
            if extra > 0:
                if self.quiet:
                    self.errors.append(f"back-edge hazard needs {extra} more states before '{line.strip()}'")
                else:
                    k = extra
                    while k > 0:
                        n = min(k, 16)
                        self.out.append(f"s_nop {n-1}"); self.nnop += 1
                        k -= n
                self.pos += extra
            self.waits(ins)
            if not self.quiet: self.out.append("    " + line.strip())
            self.hist.append((ins, self.pos))
            self.pos += ins.n if ins.kind == "nop" else 1
            if len(self.hist) > 40: self.hist.pop(0)
    def _cnt(self, q, regs):
        regs = set(regs); last = -1
        for i, (p, dst) in enumerate(q):
            if dst & regs: last = i
        return None if last < 0 else len(q) - 1 - last
    def wait_vm(self, regs):
        n = self._cnt(self.vmq, regs)
        if n is not None: self(f"s_waitcnt vmcnt({min(n,63)})")
    def wait_lg(self, regs):
        n = self._cnt(self.lgq, regs)
        if n is not None: self(f"s_waitcnt lgkmcnt({min(n,15)})")
    def wait2(self, vregs, lregs):
        a = self._cnt(self.vmq, vregs); b = self._cnt(self.lgq, lregs)
        t = []
        if a is not None: t.append(f"vmcnt({min(a,63)})")
        if b is not None: t.append(f"lgkmcnt({min(b,15)})")
        if t: self("s_waitcnt " + " ".join(t))
    def replay(self, lines):
        self.quiet = True
        for l in lines: self(l)
        self.quiet = False
    def mark(self): return len(self.out)
    def since(self, m): return [l for l in self.out[m:]]
    def text(self): return "\n".join(self.out) + "\n"
def kernel_text(name, body, vgpr, accum, sgpr=102):
    return f""".globl {name}
.p2align 8
.type {name},@function
{name}:
{body}
"""
def descriptor(name, vgpr, accum, sgpr=102):
    return f""".p2align 6
.amdhsa_kernel {name}
  .amdhsa_next_free_vgpr {vgpr}
  .amdhsa_next_free_sgpr {sgpr}
  .amdhsa_accum_offset {accum}
  .amdhsa_group_segment_fixed_size 0
  .amdhsa_kernarg_size 88
  .amdhsa_user_sgpr_count 2
  .amdhsa_user_sgpr_kernarg_segment_ptr 1
  .amdhsa_system_sgpr_workgroup_id_x 1
  .amdhsa_float_denorm_mode_32 3
.end_amdhsa_kernel
"""

def V(a, n=1): return [("v", i) for i in range(a, a + n)]
def A(a, n=1): return [("a", i) for i in range(a, a + n)]
```

```python
from fw import *
from common import *
ST, RR, EX, XT, WT = 0, 2048, 4096, 12288, 69632
LDS = 126976
NWG = 224
def gen(prefetch_bytes=0, stamps=False):
    e = Emit()
    vLane, vX0, vX1, vW0, vW1 = 1, 10, 11, 12, 13
    vA = [14, 15, 16, 17]; vB = [18, 19, 20, 21]
    vOnes, vSq, vSm, vPar, vE, vT, vL16, vZ = 22, 23, 24, 25, 26, 27, 28, 29
    FR = 32
    TL, TO = 64, 80
    D1, PK = 96, 112
    C0, S0, C1, S1, N0, N1 = 120, 124, 128, 132, 136, 140
    D2 = 144; RV = 160
    sW, sRow, sC = 36, 37, 38
    e(f"""
    s_cmp_ge_u32 s2, {NWG}
    s_cbranch_scc1 L_k1_end
    s_load_dwordx2 s[8:9], s[0:1], 0
    s_load_dwordx2 s[12:13], s[0:1], 24
    s_load_dwordx2 s[14:15], s[0:1], 32
    s_load_dwordx4 s[20:23], s[0:1], 48
    s_load_dwordx2 s[28:29], s[0:1], 80
    """)
    if stamps: e("s_memrealtime s[60:61]")
    if prefetch_bytes:
        e(f"""
        s_cmp_ge_u32 s2, 16
        s_cbranch_scc1 L_k1_nopf
        s_getpc_b64 s[32:33]
        L_k1_pc:
        s_and_b32 s33, s33, 0xffff
        s_mov_b32 s34, L_code_end-L_k1_pc
        s_mov_b32 s35, 0x20000
        v_lshlrev_b32 v2, 6, v0
        s_mov_b32 s39, 16384
        buffer_load_dword v176, v2, s[32:35], 0 offen
        buffer_load_dword v177, v2, s[32:35], s39 offen
        L_k1_nopf:
        """)
    e(f"""
    v_and_b32 v{vLane}, 63, v0
    v_lshrrev_b32 v2, 6, v0
    s_and_b32 s40, s2, 7
    v_readfirstlane_b32 s{sW}, v2
    s_lshr_b32 s41, s2, 3
    s_mul_i32 s42, s41, 37
    s_lshr_b32 s42, s42, 8            ; idx/7
    s_mul_i32 s43, s42, 7
    s_sub_u32 s{sC}, s41, s43         ; c = idx%7
    s_lshl_b32 s40, s40, 2
    s_add_u32 s{sRow}, s40, s42       ; s2 residue
    v_lshrrev_b32 v2, 3, v{vLane}     ; r8
    v_and_b32 v3, 7, v{vLane}         ; p
    v_lshrrev_b32 v4, 1, v2
    v_xor_b32 v3, v3, v4
    v_lshlrev_b32 v3, 4, v3
    v_mul_u32_u24 v4, 28672, v2
    v_add_u32 v{vX0}, v4, v3
    v_xor_b32 v{vX1}, 64, v{vX0}
    v_mul_u32_u24 v4, 896, v2
    v_add_u32 v{vW0}, v4, v3
    v_xor_b32 v{vW1}, 64, v{vW0}
    v_lshlrev_b32 v{vL16}, 4, v{vLane}
    v_lshrrev_b32 v5, 5, v{vLane}     ; h
    v_bfe_u32 v6, v{vLane}, 4, 1
    v_and_b32 v7, 15, v{vLane}
    v_lshlrev_b32 v7, 3, v7
    s_waitcnt lgkmcnt(0)
    s_mov_b32 s10, {S*ROWB}
    s_mov_b32 s11, 0x20000
    s_cmp_ge_u32 s{sW}, 2
    s_cselect_b32 s16, s14, s12
    s_cselect_b32 s17, s15, s13
    s_mov_b32 s18, {D*D*2}
    s_mov_b32 s19, 0x20000
    s_mov_b32 s30, {WS_H}
    s_mov_b32 s31, 0x20000
    """)
    e(f"""
    s_cmp_ge_u32 s2, 196
    s_cbranch_scc1 L_k1_notask
    s_lshl_b32 s44, s2, 2
    s_add_u32 s44, s44, s{sW}
    s_cmp_ge_u32 s44, 392
    s_cbranch_scc1 L_k1_w2task
    ; W1 task: kk16 = id / 14 (0..27), Bf = id % 14
    s_mul_i32 s45, s44, 4682
    s_lshr_b32 s45, s45, 16            ; id/14
    s_mul_i32 s46, s45, 14
    s_sub_u32 s46, s44, s46            ; Bf
    s_mov_b32 s24, s20
    s_mov_b32 s25, s21
    s_mul_i32 s47, s45, {16*3584}
    s_lshl_b32 s48, s46, 8
    s_add_u32 s47, s47, s48
    s_mov_b32 s48, 28672               ; A (h stride)
    s_mov_b32 s49, 128                 ; B
    s_mov_b32 s50, 14336
    s_mul_i32 s51, s46, {2*28*2048}
    s_lshl_b32 s52, s45, 11
    s_add_u32 s51, s51, s52
    s_add_u32 s51, s51, {WS_W1F}
    s_mov_b32 s52, 1024
    s_mov_b32 s53, 57344
    s_mov_b32 s54, 58368
    s_branch L_k1_taskld
    L_k1_w2task:
    s_sub_u32 s44, s44, 392
    s_mul_i32 s45, s44, 9363
    s_lshr_b32 s45, s45, 16
    s_mul_i32 s46, s45, 7
    s_sub_u32 s46, s44, s46            ; Bn
    s_lshr_b32 s55, s45, 3             ; j
    s_and_b32 s56, s45, 7              ; k2 = 2*w2+ft
    s_mov_b32 s24, s22
    s_mov_b32 s25, s23
    s_lshl_b32 s57, s55, 1
    s_lshr_b32 s58, s56, 2
    s_add_u32 s57, s57, s58
    s_lshl_b32 s57, s57, 7
    s_and_b32 s58, s56, 3
    s_add_u32 s57, s57, s58            ; F0
    s_mul_i32 s47, s57, 896
    s_lshl_b32 s58, s46, 7
    s_add_u32 s47, s47, s58
    s_mov_b32 s48, 57344
    s_mov_b32 s49, 14336
    s_mov_b32 s50, 28672
    s_mul_i32 s51, s55, 28
    s_lshl_b32 s58, s46, 2
    s_add_u32 s51, s51, s58
    s_lshl_b32 s51, s51, 3
    s_add_u32 s51, s51, s56
    s_lshl_b32 s51, s51, 10
    s_add_u32 s51, s51, {WS_W2F}
    s_mov_b32 s52, 8192
    s_mov_b32 s53, 16384
    s_mov_b32 s54, 24576
    L_k1_taskld:
    s_mov_b32 s26, {D*F*2}
    s_mov_b32 s27, 0x20000
    v_mul_lo_u32 v8, v5, s48
    v_mul_lo_u32 v9, v6, s49
    v_add3_u32 v{vT}, v8, v9, v7
    s_add_u32 s50, s50, s47
    """)
    for i in range(8):
        base = "s47" if i < 4 else "s50"
        if i % 4:
            e(f"s_add_u32 s59, {base}, {3584*(i%4)}")
            e(f"buffer_load_dwordx2 v[{TL+2*i}:{TL+2*i+1}], v{vT}, s[24:27], s59 offen")
        else:
            e(f"buffer_load_dwordx2 v[{TL+2*i}:{TL+2*i+1}], v{vT}, s[24:27], {base} offen")
    e("L_k1_notask:")
    e(f"""
    s_mul_i32 s40, s{sW}, {2*229376}
    s_mul_i32 s41, s{sRow}, 896
    s_add_u32 s40, s40, s41
    s_add_u32 s41, s40, 229376
    s_and_b32 s42, s{sW}, 1
    s_lshl_b32 s42, s42, 4
    s_lshl_b32 s43, s{sC}, 5
    s_add_u32 s42, s42, s43
    s_add_u32 s42, s42, 1
    s_mul_i32 s42, s42, 896
    s_add_u32 s43, s42, {8*896}
    s_lshl_b32 s62, s{sW}, 11          ; 2w*1024
    """)
    for kk in range(7):
        for (voff, srd, soff, base, ee) in ((vX0, 8, 40, XT, 0), (vW0, 16, 42, WT, 0), (vX1, 8, 41, XT, 1), (vW1, 16, 43, WT, 1)):
            e(f"s_add_u32 m0, s62, {base + kk*8064 + ee*1024}")
            e(f"buffer_load_dwordx4 v{voff}, s[{srd}:{srd+3}], s{soff} offen offset:{kk*128} lds")
    e(f"""
    v_and_b32 v2, 31, v{vLane}
    s_and_b32 s40, s{sW}, 1            ; mh
    s_lshr_b32 s41, s{sW}, 1           ; ci
    v_lshrrev_b32 v3, 3, v2
    v_lshlrev_b32 v3, 10, v3
    v_and_b32 v4, 7, v2
    v_lshlrev_b32 v4, 7, v4
    v_add_u32 v3, v3, v4
    v_bfe_u32 v4, v2, 1, 3             ; key
    s_lshl_b32 s42, s40, 12
    s_add_u32 s42, s42, {XT}
    v_add_u32 v3, s42, v3
    s_sub_u32 s43, s41, s40
    s_lshl_b32 s43, s43, 12
    s_add_u32 s43, s43, {WT-XT}        ; B - A delta
    """)
    for st in range(4):
        e(f"""
        s_xor_b32 s44, s41, {st}
        s_lshl_b32 s44, s44, 1
        v_add_u32 v6, s44, v5
        v_xor_b32 v6, v6, v4
        v_lshl_add_u32 v{vA[st]}, v6, 4, v3
        v_add_u32 v{vB[st]}, s43, v{vA[st]}
        """)
    e(f"""
    v_mov_b32 v{vOnes}, 0x3f803f80
    v_mov_b32 v{vSq}, 0
    v_mov_b32 v{vSm}, 0
    v_and_b32 v2, 15, v{vLane}
    s_lshl_b32 s44, s{sW}, 4
    v_add_u32 v6, s44, v2
    v_cvt_f32_u32 v6, v6
    v_mul_f32 v6, {f32(1/64)}, v6      ; t1/64
    v_lshrrev_b32 v7, 5, v{vLane}
    v_lshlrev_b32 v7, 4, v7
    v_bfe_u32 v8, v{vLane}, 4, 1
    v_lshl_add_u32 v7, v8, 2, v7
    v_cvt_f32_u32 v7, v7
    v_mul_f32 v7, v6, v7
    v_and_b32 v8, 1, v{vLane}
    v_mul_u32_u24 v8, 0x8000, v8
    v_lshl_or_b32 v{vPar}, v8, 16, v8
    """)
    for a in range(4):
        i0, i1 = 2*a, 2*a+1
        s0, s1 = 8*(i0 >> 2) + (i0 & 3), 8*(i1 >> 2) + (i1 & 3)
        e(f"""
        v_fmamk_f32 v2, v6, {f32(s0)}, v7
        v_fmamk_f32 v3, v6, {f32(s1)}, v7
        v_cos_f32 v8, v2
        v_cos_f32 v9, v3
        v_sin_f32 v2, v2
        v_sin_f32 v3, v3
        v_cvt_pk_bf16_f32 v{C0+a}, v8, v9
        v_cvt_pk_bf16_f32 v{S0+a}, v2, v3
        """)
    for a in range(4):
        e(f"""
        v_xor_b32 v{C1+a}, v{vPar}, v{C0+a}
        v_xor_b32 v{S1+a}, v{vPar}, v{S0+a}
        v_xor_b32 v{N0+a}, 0x80008000, v{S0+a}
        v_xor_b32 v{N1+a}, 0x80008000, v{S1+a}
        """)
    e(f"""
    v_and_b32 v2, 15, v{vLane}
    v_lshlrev_b32 v3, 4, v2
    v_bfe_u32 v4, v{vLane}, 4, 1
    v_lshl_add_u32 v3, v4, 9, v3
    v_lshrrev_b32 v4, 5, v{vLane}
    v_lshl_add_u32 v3, v4, 10, v3
    v_add_u32 v{vE}, {EX}, v3
    v_lshrrev_b32 v4, 4, v{vLane}
    v_mul_u32_u24 v4, {4*28672}, v4
    v_lshl_add_u32 v{vZ}, v2, 2, v4
    """)
    for kk in range(7):
        e(f"s_waitcnt vmcnt({4*(6-kk)})\ns_barrier")
        for st in range(4):
            e(f"ds_read_b128 v[{FR+8*st}:{FR+8*st+3}], v{vA[st]} offset:{kk*8192}")
            e(f"ds_read_b128 v[{FR+8*st+4}:{FR+8*st+7}], v{vB[st]} offset:{kk*8192}")
        for st in range(4):
            e(f"s_waitcnt lgkmcnt({6-2*st})")
            c = "0" if (kk == 0 and st == 0) else f"v[{D1}:{D1+15}]"
            e(f"v_mfma_f32_32x32x16_bf16 v[{D1}:{D1+15}], v[{FR+8*st}:{FR+8*st+3}], v[{FR+8*st+4}:{FR+8*st+7}], {c}")
            if st % 2 == 0:
                for d in range(4):
                    e(f"v_dot2c_f32_bf16 v{vSq}, v{FR+8*st+d}, v{FR+8*st+d}")
                    e(f"v_dot2c_f32_bf16 v{vSm}, v{FR+8*st+d}, v{vOnes}")
    e(f"""
    v_and_b32 v2, 31, v{vLane}
    s_lshl_b32 s44, s40, 5
    v_add_u32 v2, s44, v2              ; row
    v_lshlrev_b32 v3, 5, v2            ; row*32
    s_lshl_b32 s44, s41, 4
    v_lshl_add_u32 v4, v5, 3, v3
    v_add_u32 v4, s44, v4
    v_mov_b32 v6, v{vSq}
    v_mov_b32 v7, v{vSm}
    ds_write_b64 v4, v[6:7] offset:{ST}
    """)
    e(f"""
    s_cmp_ge_u32 s2, 196
    s_cbranch_scc1 L_k1_notask2
    s_mov_b32 s56, 0x05040100
    s_mov_b32 s57, 0x07060302
    """)
    for i in range(4):
        for a in range(4):
            sel = "s56" if i % 2 == 0 else "s57"
            e(f"v_perm_b32 v{TO+4*i+a}, v{TL+2*(2*a+1)+i//2}, v{TL+2*(2*a)+i//2}, {sel}")
    e(f"""
    s_add_u32 s52, s52, s51
    s_add_u32 s53, s53, s51
    s_add_u32 s54, s54, s51
    buffer_store_dwordx4 v[{TO}:{TO+3}], v{vL16}, s[28:31], s51 offen
    buffer_store_dwordx4 v[{TO+4}:{TO+7}], v{vL16}, s[28:31], s52 offen
    buffer_store_dwordx4 v[{TO+8}:{TO+11}], v{vL16}, s[28:31], s53 offen
    buffer_store_dwordx4 v[{TO+12}:{TO+15}], v{vL16}, s[28:31], s54 offen
    L_k1_notask2:
    s_waitcnt lgkmcnt(0)
    s_barrier
    ds_read_b128 v[32:35], v3 offset:{ST}
    ds_read_b128 v[36:39], v3 offset:{ST+16}
    v_and_b32 v2, 31, v{vLane}
    s_lshl_b32 s44, s{sW}, 7
    v_lshl_add_u32 v8, v2, 2, s44
    v_lshl_add_u32 v9, v5, 4, s44
    s_waitcnt lgkmcnt(0)
    v_add_f32 v32, v32, v34
    v_add_f32 v36, v36, v38
    v_add_f32 v33, v33, v35
    v_add_f32 v37, v37, v39
    v_add_f32 v32, v32, v36
    v_add_f32 v33, v33, v37            ; sum
    v_mul_f32 v33, {f32(1/448)}, v33   ; mean
    v_mul_f32 v32, {f32(1/448)}, v32
    v_fma_f32 v32, -v33, v33, v32      ; variance
    v_add_f32 v32, {f32(1e-5)}, v32
    v_rsq_f32 v32, v32
    s_nop 0
    ds_write_b32 v8, v32 offset:{RR}
    s_waitcnt lgkmcnt(0)
    """)
    for q in range(4):
        e(f"ds_read_b128 v[{RV+4*q}:{RV+4*q+3}], v9 offset:{RR+32*q}")
    e("s_waitcnt lgkmcnt(0)")
    for r in range(16):
        e(f"v_mul_f32 v{D1+r}, v{D1+r}, v{RV+r}")
    for a in range(8):
        e(f"v_cvt_pk_bf16_f32 v{PK+a}, v{D1+2*a}, v{D1+2*a+1}")
    e(f"""
    s_lshl_b32 s44, s41, 1
    s_add_u32 s44, s44, s40
    s_lshl_b32 s44, s44, 11
    s_add_u32 s44, s44, {EX}
    v_add_u32 v2, s44, v{vL16}
    ds_write_b128 v2, v[{PK}:{PK+3}]
    ds_write_b128 v2, v[{PK+4}:{PK+7}] offset:1024
    s_waitcnt lgkmcnt(0)
    s_barrier
    """)
    for nu in range(2):
        for cm in range(4):
            e(f"ds_read_b128 v[{FR+4*(4*nu+cm)}:{FR+4*(4*nu+cm)+3}], v{vE} offset:{cm*2048+nu*256}")
    Afr = {(0, 0, 0): C0, (0, 1, 0): C1, (1, 0, 0): S0, (1, 1, 0): S1,
           (0, 0, 1): N0, (0, 1, 1): N1, (1, 0, 1): C0, (1, 1, 1): C1}
    for nu in range(2):
        for cm in range(4):
            e(f"s_waitcnt lgkmcnt({7-(4*nu+cm)})")
            ci, mh = cm >> 1, cm & 1
            for co in range(2):
                d = D2 + 4*(2*nu+co); a = Afr[(ci, mh, co)]; b = FR + 4*(4*nu+cm)
                c = "0" if cm == 0 else f"v[{d}:{d+3}]"
                e(f"v_mfma_f32_16x16x32_bf16 v[{d}:{d+3}], v[{a}:{a+3}], v[{b}:{b+3}], {c}")
    e(f"""
    s_mul_i32 s44, s{sW}, {16*28672}
    s_mul_i32 s45, s{sRow}, 896
    s_add_u32 s44, s44, s45
    s_lshl_b32 s45, s{sC}, 7
    s_add_u32 s44, s44, s45
    s_add_u32 s45, s44, 28672
    s_add_u32 s46, s44, {2*28672}
    s_add_u32 s47, s44, {3*28672}
    """)
    for nu in range(2):
        for r in range(4):
            e(f"v_cvt_pk_bf16_f32 v{PK+4*nu+r}, v{D2+4*(2*nu)+r}, v{D2+4*(2*nu+1)+r}")
        for r in range(4):
            e(f"buffer_store_dword v{PK+4*nu+r}, v{vZ}, s[28:31], s{44+r} offen offset:{nu*64}")
    if stamps:
        e(f"""
        s_memrealtime s[62:63]
        s_waitcnt lgkmcnt(0) vmcnt(0)
        s_memrealtime s[64:65]
        s_waitcnt lgkmcnt(0)
        s_lshl_b32 s44, s2, 2
        s_add_u32 s44, s44, s{sW}
        s_lshl_b32 s44, s44, 5
        s_add_u32 s44, s44, 0x8000000
        v_mov_b32 v2, s60
        v_mov_b32 v3, s62
        v_mov_b32 v4, s64
        v_mov_b32 v5, s61
        s_mov_b32 s30, 0x9000000
        v_mov_b32 v6, s44
        v_cmp_eq_u32 vcc, 0, v{vLane}
        s_and_saveexec_b64 s[66:67], vcc
        buffer_store_dwordx4 v[2:5], v6, s[28:31], 0 offen
        s_mov_b64 exec, s[66:67]
        """)
    e("L_k1_end:\ns_endpgm")
    assert not e.errors, "\n".join(e.errors)
    return e.text(), 184, 184
if __name__ == "__main__":
    t, v, a = gen()
    print(t)
```

```python
from fw import *
from common import *
XT = 0
ZT = 57600
HX = ZT
ST = ZT + 65536
MR = ST + 2048
LDS = MR + 2048
def gen(stamps=False):
    e = Emit()
    vLane, vL16, vX0, vX1 = 1, 10, 11, 12
    vZe, vZo = 13, 14
    vBx = [15, 16, 17, 18]
    vH = list(range(19, 27))
    vSq, vSm, vOnes, vHalf = 27, 28, 29, 30
    vT = 31
    WA = [32, 64]
    TW = 96
    SEL = 112
    ZA = [120, 136]
    XB = [152, 160]
    DD = [168, 184]
    PK = 200
    ACC = 96
    BB = [160, 168]
    CS = [176, 177]
    CA = 180
    CB = 188
    RS = 196
    PK2 = 200
    vB = [208, 209, 210, 211]
    vHX = 212
    D2 = [96, 112]
    PK3 = [128, 136]
    sW, sRS, sSide, sU, sJ, sA, sB, sStream, sP = 36, 37, 38, 39, 40, 41, 42, 43, 44
    if stamps: e("s_memrealtime s[60:61]")
    e(f"""
    s_cmp_ge_u32 s2, 256
    s_cbranch_scc1 L_k2_end
    s_and_b32 s45, s2, 7
    s_lshr_b32 s46, s2, 3
    s_lshr_b32 s47, s45, 1
    s_lshl_b32 s47, s47, 1
    s_lshr_b32 s48, s46, 4
    s_add_u32 s{sJ}, s47, s48          ; chunk
    s_cmp_ge_u32 s{sJ}, 7
    s_cbranch_scc1 L_k2_end
    s_load_dwordx2 s[8:9], s[0:1], 80
    s_load_dwordx2 s[12:13], s[0:1], 0
    s_and_b32 s45, s45, 1
    s_lshl_b32 s45, s45, 4
    s_and_b32 s46, s46, 15
    s_add_u32 s{sU}, s45, s46          ; unit
    v_and_b32 v{vLane}, 63, v0
    v_lshrrev_b32 v2, 6, v0
    v_lshlrev_b32 v{vL16}, 4, v{vLane}
    v_readfirstlane_b32 s{sW}, v2
    s_mov_b32 s{sA}, s{sU}
    s_sub_u32 s{sB}, 64, s{sU}
    s_cmp_eq_u32 s{sU}, 0
    s_cselect_b32 s{sB}, 32, s{sB}
    s_and_b32 s{sRS}, s{sW}, 1
    s_lshr_b32 s{sSide}, s{sW}, 1
    v_lshrrev_b32 v2, 3, v{vLane}
    v_and_b32 v3, 7, v{vLane}
    v_lshrrev_b32 v4, 1, v2
    v_xor_b32 v3, v3, v4
    v_lshlrev_b32 v3, 4, v3
    v_mul_u32_u24 v4, 57344, v2
    v_add_u32 v{vX0}, v4, v3
    v_xor_b32 v{vX1}, 64, v{vX0}
    s_cmp_ge_u32 s{sW}, 2
    s_cselect_b32 s45, s{sB}, s{sA}
    s_lshl_b32 s46, s45, 5
    s_lshl_b32 s47, s{sRS}, 4
    s_add_u32 s46, s46, s47
    s_mul_i32 s46, s46, 896            ; Z source
    s_lshl_b32 s47, s{sW}, 14
    s_add_u32 s47, s47, {ZT}
    ; x source: rows cls + 64*(8*(beta%4)+r8), beta = 2w, 2w+1
    s_lshl_b32 s48, s{sRS}, 10         ; 64*8*2*(w&1)
    s_add_u32 s48, s48, s45
    s_mul_i32 s48, s48, 896
    s_add_u32 s49, s48, {512*896}
    s_lshl_b32 s50, s{sW}, 11
    s_waitcnt lgkmcnt(0)
    s_mov_b32 s10, {WS_END}
    s_mov_b32 s11, 0x20000
    s_mov_b32 s14, {S*ROWB}
    s_mov_b32 s15, 0x20000
    s_mov_b32 exec_hi, 0x00ffffff
    """)
    for i in range(16):
        e(f"s_add_u32 m0, s47, {i*1024}")
        e(f"s_add_u32 s51, s46, {WS_Z + i*896}")
        e(f"buffer_load_dwordx4 v{vL16}, s[8:11], s51 offen lds")
    e("s_mov_b32 exec_hi, -1")
    for kk in range(7):
        for (voff, soff, ee) in ((vX0, 48, 0), (vX1, 49, 1)):
            e(f"s_add_u32 m0, s50, {XT + kk*8064 + ee*1024}")
            e(f"buffer_load_dwordx4 v{voff}, s[12:15], s{soff} offen offset:{kk*128} lds")
    n_dma = 30
    e(f"""
    s_lshl_b32 s45, s{sJ}, 2
    s_add_u32 s45, s45, s{sW}
    s_mul_i32 s{sStream}, s45, 57344
    s_add_u32 s52, s{sStream}, {WS_W2F}
    s_add_u32 s{sStream}, s{sStream}, {WS_W1F}
    """)
    stream = {"n": 0}
    def wload(z_global):
        s_ = (z_global // 8) % 2; z = z_global % 8
        r = WA[s_] + 4*z
        if z_global == 56: e(f"s_mov_b32 s{sStream}, s52")
        k = z_global % 4
        e(f"buffer_load_dwordx4 v[{r}:{r+3}], v{vL16}, s[8:11], s{sStream} offen offset:{k*1024}")
        if k == 3: e(f"s_add_u32 s{sStream}, s{sStream}, 4096")
    for z in range(16): wload(z)
    e(f"""
    v_and_b32 v2, 31, v{vLane}         ; t / m
    v_lshrrev_b32 v{vHalf}, 5, v{vLane}
    v_mov_b32 v{vOnes}, 0x3f803f80
    v_mov_b32 v{vSq}, 0
    v_mov_b32 v{vSm}, 0
    v_lshlrev_b32 v3, 10, v{vLane}
    v_add_u32 v3, {ZT-4}, v3
    v_mov_b32 v4, 0
    ds_write_b32 v3, v4
    v_lshrrev_b32 v3, 3, v2
    v_lshlrev_b32 v3, 10, v3
    v_and_b32 v4, 7, v2
    v_lshl_add_u32 v3, v4, 7, v3
    s_lshl_b32 s45, s{sRS}, 12
    v_add_u32 v3, s45, v3
    v_bfe_u32 v4, v2, 1, 3             ; key
    v_xor_b32 v5, v4, v{vHalf}
    v_lshl_add_u32 v{vBx[0]}, v5, 4, v3
    v_xor_b32 v{vBx[1]}, 32, v{vBx[0]}
    v_xor_b32 v{vBx[2]}, 64, v{vBx[0]}
    v_xor_b32 v{vBx[3]}, 96, v{vBx[0]}
    v_lshl_add_u32 v5, v4, 4, v3
    v_lshl_add_u32 v{vH[0]}, v{vHalf}, 3, v5
    """)
    for p in range(1, 8): e(f"v_xor_b32 v{vH[p]}, {16*p}, v{vH[0]}")
    e(f"""
    s_xor_b32 s45, s{sRS}, 1
    s_cmp_eq_u32 s{sU}, 0
    s_cselect_b32 s45, s{sRS}, s45
    s_cmp_eq_u32 s{sSide}, 0
    s_cselect_b32 s45, s{sRS}, s45
    s_lshl_b32 s45, s45, 15
    s_add_u32 s45, s45, {ZT}
    v_lshlrev_b32 v3, 12, v{vHalf}
    v_add_u32 v3, s45, v3
    v_sub_u32 v4, 31, v2
    v_subrev_u32 v5, 1, v2
    s_cmp_eq_u32 s{sSide}, 0
    s_cselect_b64 s[46:47], -1, 0
    v_cndmask_b32 v4, v4, v5, s[46:47]     ; L: m-1 ; R: 31-m
    v_lshl_add_u32 v{vZe}, v4, 2, v3
    v_add_u32 v{vZo}, 128, v{vZe}
    s_cmp_eq_u32 s{sRS}, 0
    s_cselect_b32 s45, s{sA}, s{sB}
    v_lshl_add_u32 v3, v2, 6, s45
    v_cvt_f32_u32 v3, v3
    s_lshl_b32 s45, s{sSide}, 31
    s_xor_b32 s45, s45, {f32(1/2048)}
    v_mul_f32 v3, s45, v3
    v_lshlrev_b32 v4, 2, v{vHalf}
    v_cvt_f32_u32 v4, v4
    v_mul_f32 v4, v3, v4
    """)
    for k4 in range(4):
        for jj in range(4):
            e(f"""
            v_fmamk_f32 v5, v3, {f32(8*k4+jj)}, v4
            v_cos_f32 v6, v5
            v_sin_f32 v7, v5
            v_cvt_pk_bf16_f32 v{TW+4*k4+jj}, v6, v7
            """)
    e(f"""
    v_and_b32 v5, 1, v2
    v_lshlrev_b32 v5, 4, v5
    v_mov_b32 v6, 0x3f80
    v_lshlrev_b32 v5, v5, v6
    v_lshlrev_b32 v6, 3, v{vHalf}
    v_sub_u32 v6, v2, v6               ; q = m - 8h
    v_ashrrev_i32 v7, 1, v6
    v_subrev_u32 v6, 16, v6
    v_ashrrev_i32 v8, 1, v6
    """)
    for a in range(4):
        e(f"v_cmp_eq_u32 s[{70+2*a}:{71+2*a}], {a}, v7")
    for a in range(4):
        e(f"v_cmp_eq_u32 s[{78+2*a}:{79+2*a}], {a}, v8")
    for a in range(4):
        e(f"v_cndmask_b32 v{SEL+a}, 0, v5, s[{70+2*a}:{71+2*a}]")
    for a in range(4):
        e(f"v_cndmask_b32 v{SEL+4+a}, 0, v5, s[{78+2*a}:{79+2*a}]")
    e(f"s_waitcnt vmcnt(16) lgkmcnt(0)\ns_barrier")
    e(f"s_cmp_eq_u32 s{sSide}, 0\ns_cbranch_scc0 L_k2_sideR")
    state = (list(e.vmq), list(e.lgq), list(e.hist), e.pos)
    def pass2(side):
        def reads(i):
            b = i % 2
            ii = i if side == 0 else 6 - i
            va = vZe if ii % 2 == 0 else vZo
            for k4 in range(4):
                for jj in (0, 2):
                    u0 = (8*k4+jj)*4 + ii//2
                    r = ZA[b] + 4*k4 + jj
                    e(f"ds_read2st64_b32 v[{r}:{r+1}], v{va} offset0:{u0} offset1:{u0+4}")
            J = 7*side + i
            for s_ in range(2):
                r = XB[b] + 4*s_
                e(f"ds_read_b128 v[{r}:{r+3}], v{vBx[2*(J%2)+s_]} offset:{(J//2)*8192}")
        def mfmas(i):
            b = i % 2; d = DD[b]
            e.wait_lg(V(ZA[b], 16) + V(XB[b], 8))
            if i + 1 < 7: reads(i+1)
            e(f"v_mfma_f32_32x32x16_bf16 v[{d}:{d+15}], v[{SEL}:{SEL+3}], v[{XB[b]}:{XB[b]+3}], 0")
            e(f"v_mfma_f32_32x32x16_bf16 v[{d}:{d+15}], v[{SEL+4}:{SEL+7}], v[{XB[b]+4}:{XB[b]+7}], v[{d}:{d+15}]")
            for k4 in range(4):
                e(f"v_mfma_f32_32x32x16_bf16 v[{d}:{d+15}], v[{ZA[b]+4*k4}:{ZA[b]+4*k4+3}], v[{TW+4*k4}:{TW+4*k4+3}], v[{d}:{d+15}]")
        def epi(i):
            d = DD[i % 2]; J = 7*side + i
            for a in range(8):
                e(f"v_cvt_pk_bf16_f32 v{PK+a}, v{d+2*a}, v{d+2*a+1}")
            for q in range(4):
                e(f"ds_write_b64 v{vH[4*(J%2)+q]}, v[{PK+2*q}:{PK+2*q+1}] offset:{(J//2)*8192}")
            for a in range(8):
                e(f"v_dot2c_f32_bf16 v{vSq}, v{PK+a}, v{PK+a}")
                e(f"v_dot2c_f32_bf16 v{vSm}, v{PK+a}, v{vOnes}")
        reads(0)
        for i in range(7):
            mfmas(i)
            if i > 0: epi(i-1)
        epi(6)
    pass2(0)
    e("s_branch L_k2_p2done\nL_k2_sideR:")
    endL = (list(e.vmq), list(e.lgq))
    e.vmq, e.lgq, e.hist, e.pos = list(state[0]), list(state[1]), list(state[2]), state[3]
    pass2(1)
    e("L_k2_p2done:")
    e(f"""
    v_and_b32 v2, 31, v{vLane}
    s_lshl_b32 s45, s{sRS}, 5
    v_add_u32 v2, s45, v2
    v_lshlrev_b32 v2, 5, v2
    s_lshl_b32 s45, s{sSide}, 4
    v_lshl_add_u32 v2, v{vHalf}, 3, v2
    v_add_u32 v2, s45, v2
    v_mov_b32 v4, v{vSq}
    v_mov_b32 v5, v{vSm}
    v_add_u32 v2, {ST}, v2
    ds_write_b64 v2, v[4:5]
    """)
    e(f"""
    s_lshl_b32 s45, s{sRS}, 12
    v_subrev_u32 v{vB[0]}, s45, v{vBx[0]}
    v_subrev_u32 v{vB[1]}, s45, v{vBx[1]}
    v_subrev_u32 v{vB[2]}, s45, v{vBx[2]}
    v_subrev_u32 v{vB[3]}, s45, v{vBx[3]}
    s_waitcnt lgkmcnt(0)
    s_barrier
    """)
    def breads(step):
        kk, k4 = step // 4, step % 4; b = BB[step % 2]
        for T in range(2):
            e(f"ds_read_b128 v[{b+4*T}:{b+4*T+3}], v{vB[k4]} offset:{kk*8192 + T*4096}")
    e(f"""
    v_lshlrev_b32 v2, 5, v{vLane}
    v_add_u32 v2, {ST}, v2
    ds_read_b128 v[4:7], v2
    ds_read_b128 v[{PK}:{PK+3}], v2 offset:16
    s_lshl_b32 s45, s{sJ}, 13
    s_lshl_b32 s46, s{sW}, 11
    s_add_u32 s45, s45, s46
    v_add_u32 v3, s45, v{vL16}
    ds_read_b128 v[{CA}:{CA+3}], v3 offset:{XT}
    ds_read_b128 v[{CA+4}:{CA+7}], v3 offset:{XT+1024}
    """)
    breads(0)
    e(f"""
    s_lshl_b32 s45, s{sJ}, 7
    s_add_u32 s45, s45, {WS_H}
    s_add_u32 s46, s45, s48
    s_add_u32 s47, s45, s49
    """)
    e.wait_lg(V(4, 4) + V(PK, 4))
    e(f"""
    v_add_f32 v4, v4, v6
    v_add_f32 v5, v5, v7
    v_add_f32 v{PK}, v{PK}, v{PK+2}
    v_add_f32 v{PK+1}, v{PK+1}, v{PK+3}
    v_add_f32 v4, v4, v{PK}
    v_add_f32 v5, v5, v{PK+1}
    v_mul_f32 v5, {f32(1/448)}, v5
    v_mul_f32 v4, {f32(1/448)}, v4
    v_fma_f32 v4, -v5, v5, v4
    v_add_f32 v4, {f32(1e-5)}, v4
    v_rsq_f32 v7, v4
    v_sub_f32 v6, 0, v5
    s_lshl_b32 s45, s{sW}, 9
    s_add_u32 s45, s45, {MR}
    v_lshl_add_u32 v2, v{vLane}, 3, s45
    ds_write_b64 v2, v[6:7]
    """)
    e.wait_lg(V(CA, 8))
    e(f"""
    buffer_store_dwordx4 v[{CA}:{CA+3}], v{vX0}, s[8:11], s46 offen
    buffer_store_dwordx4 v[{CA+4}:{CA+7}], v{vX1}, s[8:11], s47 offen
    v_and_b32 v3, 31, v{vLane}
    v_lshl_add_u32 v3, v3, 3, s45
    v_and_b32 v4, 15, v{vLane}
    v_lshl_add_u32 v4, v4, 3, s45
    ds_read_b32 v6, v3
    ds_read_b32 v7, v3 offset:256
    ds_read_b32 v{RS}, v4 offset:4
    ds_read_b32 v{RS+1}, v4 offset:{128+4}
    ds_read_b32 v{RS+2}, v4 offset:{256+4}
    ds_read_b32 v{RS+3}, v4 offset:{384+4}
    v_mov_b32 v{CS[0]}, 0
    v_mov_b32 v{CS[1]}, 0
    """)
    e.wait_lg(V(6, 2))
    for T in range(2):
        src = 6 + T; b = CB + 4*T
        e(f"""
        v_cvt_pk_bf16_f32 v2, v{src}, v{src}
        v_and_b32 v2, 0xffff0000, v2
        v_sub_f32 v3, v{src}, v2
        v_cvt_pk_bf16_f32 v{b}, v2, v3
        v_lshrrev_b32 v{b+1}, 16, v2
        v_mov_b32 v{b+2}, 0
        v_mov_b32 v{b+3}, 0
        """)
    for step in range(28):
        kk, k4 = step // 4, step % 4; s_ = kk % 2; b = BB[step % 2]
        a0 = WA[s_] + 8*k4
        e.wait2(V(a0, 8), V(b, 8))
        if step + 1 < 28: breads(step+1)
        for ft in range(2):
            for T in range(2):
                d = ACC + 16*(2*ft+T); a = a0 + 4*ft
                c = "0" if step == 0 else f"v[{d}:{d+15}]"
                e(f"v_mfma_f32_32x32x16_bf16 v[{d}:{d+15}], v[{a}:{a+3}], v[{b+4*T}:{b+4*T+3}], {c}")
            for dw in range(4):
                e(f"v_dot2c_f32_bf16 v{CS[ft]}, v{a0+4*ft+dw}, v{vOnes}")
        wload(16 + 2*step); wload(17 + 2*step)
    e(f"""
    v_cmp_eq_u32 vcc, 0, v{vHalf}
    v_mov_b32 v2, v{CS[0]}
    v_mov_b32 v3, v{CS[1]}
    v_mov_b32 v4, v{CS[0]}
    v_mov_b32 v5, v{CS[1]}
    s_nop 1
    v_permlane32_swap_b32 v2, v4
    v_permlane32_swap_b32 v3, v5
    s_nop 1
    v_add_f32 v2, v2, v4
    v_add_f32 v3, v3, v5
    v_cndmask_b32 v2, 0, v2, vcc
    v_cndmask_b32 v3, 0, v3, vcc
    """)
    for ft in range(2):
        src = 2 + ft; a = CA + 4*ft
        e(f"""
        v_cvt_pk_bf16_f32 v{a}, v{src}, v{src}
        v_and_b32 v4, 0xffff0000, v{a}
        v_sub_f32 v4, v{src}, v4
        v_mov_b32 v5, 0
        v_cvt_pk_bf16_f32 v{a+1}, v4, v5
        v_mov_b32 v{a+2}, 0
        v_mov_b32 v{a+3}, 0
        """)
    for ft in range(2):
        for T in range(2):
            d = ACC + 16*(2*ft+T)
            e(f"v_mfma_f32_32x32x16_bf16 v[{d}:{d+15}], v[{CA+4*ft}:{CA+4*ft+3}], v[{CB+4*T}:{CB+4*T+3}], v[{d}:{d+15}]")
    e(f"""
    v_and_b32 v2, 15, v{vLane}
    v_lshlrev_b32 v2, 4, v2
    v_bfe_u32 v3, v{vLane}, 4, 1
    v_lshl_add_u32 v2, v3, 10, v2
    v_lshl_add_u32 v2, v{vHalf}, 8, v2
    s_lshl_b32 s45, s{sW}, 13
    s_add_u32 s45, s45, {HX}
    v_add_u32 v{vHX}, s45, v2
    """)
    for ft in range(2):
        for T in range(2):
            d = ACC + 16*(2*ft+T)
            for a in range(8):
                e(f"v_cvt_pk_bf16_f32 v{PK2+a}, v{d+2*a}, v{d+2*a+1}")
            for a in range(8):
                e(f"v_pk_max_i16 v{PK2+a}, v{PK2+a}, 0")
            for P in range(2):
                e(f"ds_write_b128 v{vHX}, v[{PK2+4*P}:{PK2+4*P+3}] offset:{ft*4096+T*2048+P*512}")
    e(f"""
    v_add_u32 v2, {HX}, v{vL16}
    s_mul_i32 s45, s{sU}, 7
    s_add_u32 s45, s45, s{sJ}
    s_mul_i32 s45, s45, 28
    s_mul_i32 s46, s{sW}, 7
    s_add_u32 s45, s45, s46
    s_lshl_b32 s45, s45, 11
    s_add_u32 s{sP}, s45, {WS_P}
    s_waitcnt lgkmcnt(0)
    s_barrier
    """)
    for k2 in range(8):
        for tt in range(4):
            r = 4*(4*k2+tt)
            e(f"ds_read_b128 a[{r}:{r+3}], v2 offset:{k2*4096+tt*1024}")
    def epi2(nt):
        d = D2[nt % 2]; p = PK3[nt % 2]
        for tt in range(4):
            for r in range(4):
                e(f"v_mul_f32 v{d+4*tt+r}, v{d+4*tt+r}, v{RS+tt}")
        for a in range(2):
            for tt in range(4):
                e(f"v_cvt_pk_bf16_f32 v{p+4*a+tt}, v{d+4*tt+2*a}, v{d+4*tt+2*a+1}")
        for a in range(2):
            e(f"buffer_store_dwordx4 v[{p+4*a}:{p+4*a+3}], v{vL16}, s[8:11], s{sP} offen offset:{a*1024}")
        e(f"s_add_u32 s{sP}, s{sP}, 2048")
    for nt in range(7):
        s_ = (7 + nt) % 2; d = D2[nt % 2]
        for k2 in range(8):
            a = WA[s_] + 4*k2
            e.wait2(V(a, 4), A(16*k2, 16))
            for tt in range(4):
                r = 4*(4*k2+tt)
                c = "0" if k2 == 0 else f"v[{d+4*tt}:{d+4*tt+3}]"
                e(f"v_mfma_f32_16x16x32_bf16 v[{d+4*tt}:{d+4*tt+3}], v[{a}:{a+3}], a[{r}:{r+3}], {c}")
            z = 72 + 8*nt + k2
            if z < 112: wload(z)
            if k2 == 2 and nt > 0: epi2(nt-1)
    epi2(6)
    if stamps:
        e(f"""
        s_memrealtime s[62:63]
        s_waitcnt lgkmcnt(0) vmcnt(0)
        s_memrealtime s[64:65]
        s_waitcnt lgkmcnt(0)
        s_lshl_b32 s45, s2, 2
        s_add_u32 s45, s45, s{sW}
        s_lshl_b32 s45, s45, 5
        s_add_u32 s45, s45, 0x8010000
        v_mov_b32 v2, s60
        v_mov_b32 v3, s62
        v_mov_b32 v4, s64
        v_mov_b32 v5, s61
        s_mov_b32 s10, 0x9000000
        v_mov_b32 v6, s45
        v_cmp_eq_u32 vcc, 0, v{vLane}
        s_and_saveexec_b64 s[66:67], vcc
        buffer_store_dwordx4 v[2:5], v6, s[8:11], 0 offen
        s_mov_b64 exec, s[66:67]
        """)
    e("L_k2_end:\ns_endpgm")
    assert not e.errors, "\n".join(e.errors[:20])
    return e.text(), 384, 256
if __name__ == "__main__":
    t, v, a = gen()
    print(t)
```

```python
from fw import *
from common import *
NWG = 224
def gen(stamps=False):
    e = Emit()
    vLane, vL16, vR, vLo, vHi = 1, 2, 3, 4, 5
    HH = 8
    PP = 24
    AC = 136
    OO = 168
    if stamps: e("s_memrealtime s[60:61]")
    e(f"""
    s_cmp_ge_u32 s2, {NWG}
    s_cbranch_scc1 L_k3_end
    s_load_dwordx2 s[8:9], s[0:1], 80
    s_load_dwordx2 s[12:13], s[0:1], 64
    v_and_b32 v{vLane}, 63, v0
    v_lshrrev_b32 v6, 6, v0
    v_lshlrev_b32 v{vL16}, 4, v{vLane}
    v_readfirstlane_b32 s36, v6            ; a = wave (0/1)
    s_mul_i32 s37, s2, 9363
    s_lshr_b32 s37, s37, 16                ; u
    s_mul_i32 s38, s37, 7
    s_sub_u32 s38, s2, s38                 ; Bn
    s_sub_u32 s39, 64, s37
    s_cmp_eq_u32 s37, 0
    s_cselect_b32 s39, 32, s39             ; class b
    v_and_b32 v6, 15, v{vLane}
    v_mul_u32_u24 v6, 57344, v6
    v_lshrrev_b32 v7, 4, v{vLane}
    v_lshl_add_u32 v{vR}, v7, 5, v6
    v_mov_b32 v{vLo}, 0x3f80
    v_mov_b32 v{vHi}, 0x3f800000
    s_lshl_b32 s40, s38, 7
    s_lshl_b32 s41, s36, 4
    s_add_u32 s40, s40, s41                ; Bn*128 + a*16
    s_mul_i32 s42, s37, 896
    s_add_u32 s42, s42, s40                ; tt=0
    s_add_u32 s43, s42, {1024*896}         ; tt=1
    s_mul_i32 s44, s39, 896
    s_add_u32 s44, s44, s40                ; tt=2
    s_add_u32 s45, s44, {1024*896}         ; tt=3
    s_mul_i32 s46, s37, {7*28}
    s_lshl_b32 s47, s38, 2
    s_add_u32 s46, s46, s47
    s_lshl_b32 s46, s46, 11
    s_lshl_b32 s47, s36, 10
    s_add_u32 s46, s46, s47
    s_add_u32 s46, s46, {WS_P}
    s_waitcnt lgkmcnt(0)
    s_mov_b32 s10, {WS_END}
    s_mov_b32 s11, 0x20000
    s_mov_b32 s14, {S*ROWB}
    s_mov_b32 s15, 0x20000
    """)
    for j in range(7):
        for i in range(4):
            r = PP + 4*(4*j+i)
            if i < 2:
                e(f"buffer_load_dwordx4 v[{r}:{r+3}], v{vL16}, s[8:11], s46 offen offset:{i*2048}")
            else:
                if i == 2: e("s_add_u32 s47, s46, 4096")
                e(f"buffer_load_dwordx4 v[{r}:{r+3}], v{vL16}, s[8:11], s47 offen offset:{(i-2)*2048}")
        if j < 6: e(f"s_add_u32 s46, s46, {28*2048}")
        if j == 0:
            for tt in range(4):
                e(f"s_add_u32 s48, s{42+tt}, {WS_H}")
                e(f"buffer_load_dwordx4 v[{HH+4*tt}:{HH+4*tt+3}], v{vR}, s[8:11], s48 offen")
    for j in range(7):
        for i in range(4):
            r = PP + 4*(4*j+i)
            e.wait_vm(V(r, 4))
            for tt in range(4):
                lo, hi = AC + 8*tt + i, AC + 8*tt + 4 + i
                if j == 0:
                    e(f"v_lshlrev_b32 v{lo}, 16, v{r+tt}")
                    e(f"v_and_b32 v{hi}, 0xffff0000, v{r+tt}")
                else:
                    e(f"v_dot2c_f32_bf16 v{lo}, v{r+tt}, v{vLo}")
                    e(f"v_dot2c_f32_bf16 v{hi}, v{r+tt}, v{vHi}")
    e.wait_vm(V(HH, 16))
    for tt in range(4):
        for dw in range(4):
            e(f"v_dot2c_f32_bf16 v{AC+8*tt+2*dw}, v{HH+4*tt+dw}, v{vLo}")
            e(f"v_dot2c_f32_bf16 v{AC+8*tt+2*dw+1}, v{HH+4*tt+dw}, v{vHi}")
    for tt in range(4):
        for dw in range(4):
            e(f"v_cvt_pk_bf16_f32 v{OO+4*tt+dw}, v{AC+8*tt+2*dw}, v{AC+8*tt+2*dw+1}")
        e(f"buffer_store_dwordx4 v[{OO+4*tt}:{OO+4*tt+3}], v{vR}, s[12:15], s{42+tt} offen")
    if stamps:
        e(f"""
        s_memrealtime s[62:63]
        s_waitcnt lgkmcnt(0) vmcnt(0)
        s_memrealtime s[64:65]
        s_waitcnt lgkmcnt(0)
        s_lshl_b32 s45, s2, 2
        s_add_u32 s45, s45, s36
        s_lshl_b32 s45, s45, 5
        s_add_u32 s45, s45, 0x8020000
        v_mov_b32 v8, s60
        v_mov_b32 v9, s62
        v_mov_b32 v10, s64
        v_mov_b32 v11, s61
        s_mov_b32 s10, 0x9000000
        v_mov_b32 v6, s45
        v_cmp_eq_u32 vcc, 0, v{vLane}
        s_and_saveexec_b64 s[66:67], vcc
        buffer_store_dwordx4 v[8:11], v6, s[8:11], 0 offen
        s_mov_b64 exec, s[66:67]
        """)
    e("L_k3_end:\ns_endpgm")
    assert not e.errors, "\n".join(e.errors[:20])
    return e.text(), 184, 184
if __name__ == "__main__":
    print(gen()[0])
```

```python
import sys, importlib
from fw import *
from common import *
import k1, k2, k3
HEADER = """; FNet block (pre-LN spectral mixing + pre-LN ReLU FFN) for x[2048,448], three launches.
"""
def build(stamps=False, prefetch=True):
    t1, v1, a1 = k1.gen(prefetch_bytes=1 if prefetch else 0, stamps=stamps)
    t2, v2, a2 = k2.gen(stamps=stamps)
    t3, v3, a3 = k3.gen(stamps=stamps)
    s = HEADER
    s += f"; @launch kernel={K1} grid=({k1.NWG},1,1) block=(256,1,1) lds={k1.LDS}\n"
    s += f"; @launch kernel={K2} grid=(256,1,1) block=(256,1,1) lds={k2.LDS}\n"
    s += f"; @launch kernel={K3} grid=({k3.NWG},1,1) block=(128,1,1) lds=0\n"
    s += '.amdgcn_target "amdgcn-amd-amdhsa--gfx950"\n.text\n'
    s += kernel_text(K1, t1, v1, a1) + kernel_text(K2, t2, v2, a2) + kernel_text(K3, t3, v3, a3)
    s += "L_code_end:\n"
    s += '.section .rodata,"a"\n'
    s += descriptor(K1, v1, a1) + descriptor(K2, v2, a2) + descriptor(K3, v3, a3)
    return s
if __name__ == "__main__":
    out = sys.argv[1] if len(sys.argv) > 1 else "sequential_preLN__spectral_fnet__dense_activation_relu__prompt.s"
    stamps = "stamps" in sys.argv
    open(out, "w").write(build(stamps=stamps, prefetch="nopf" not in sys.argv))
    print("wrote", out)
```
